```python
import torch

def _softmax(x, axis=-1):
    return torch.softmax(x, dim=axis)
def _gelu(x):
    return torch.nn.functional.gelu(x, approximate="tanh")
def _silu(x):
    return torch.nn.functional.silu(x)
def _sigmoid(x):
    return torch.sigmoid(x)
def _layernorm(x, axis=-1, eps=1e-5):
    m = x.mean(dim=axis, keepdim=True)
    v = x.var(dim=axis, keepdim=True, unbiased=False)
    return (x - m) / torch.sqrt(v + eps)
def _scatter_add(tgt, idx, src, axis=0):
    return tgt.clone().index_add_(axis, idx, src)
def _segment_sum(src, seg, n):
    out = torch.zeros((n,) + src.shape[1:], dtype=src.dtype)
    return out.index_add_(0, seg, src)
def _pad(x, pw):
    flat = tuple(v for pair in reversed(pw) for v in pair)
    return torch.nn.functional.pad(x, flat)

kernel_name = 'concat_heads__sliding_block_cached__compressed_kv_cla__decode'

def setup_inputs():

    _w = (lambda a: (lambda t: t.to(torch.bfloat16) if t.is_floating_point() else t)(torch.as_tensor(a)))
    def _A_setup():
        B, Sq, D = 4, 1, 512
        Hq, Hkv, Sk, Dh = 32, 8, 4096, 128
        assert Hq % Hkv == 0, (Hq, Hkv)
        return {
            "x": _w((lambda *s: torch.randn(*s, dtype=torch.bfloat16) * 0.8)(B, Sq, D)),
            "k_cache": _w((lambda *s: torch.randn(*s, dtype=torch.bfloat16) * 0.8)(B, Hkv, Sk, Dh)),
            "v_cache": _w((lambda *s: torch.randn(*s, dtype=torch.bfloat16) * 0.05)(B, Hkv, Sk, Dh)),
            "wq": _w((lambda *s: torch.randn(*s, dtype=torch.bfloat16) * 0.8)(D, Hq * Dh) * (D ** -0.5)),
            "wo": _w((lambda *s: torch.randn(*s, dtype=torch.bfloat16) * 0.05)(Hq * Dh, D) * ((Hq * Dh) ** -0.5)),
        }
    _A_in = _A_setup()

    def _B_setup():
        B, H, Sq, Sk, D, M = 4, 32, 1, 4096, 128, 512
        Dc = 4 * D
        return {
            "x": _w((lambda *s: torch.randn(*s, dtype=torch.bfloat16) * 1.6)(B, Sq, M)),
            "c_kv": _w((lambda *s: torch.randn(*s, dtype=torch.bfloat16) * 0.1)(B, Sk, Dc)),
            "w_q": _w((lambda *s: torch.randn(*s, dtype=torch.bfloat16) * 3.2)(M, H, D) * (M ** -0.5)),
            "w_uk": _w((lambda *s: torch.randn(*s, dtype=torch.bfloat16) * 3.2)(Dc, H, D) * (Dc ** -0.5)),
            "w_uv": _w((lambda *s: torch.randn(*s, dtype=torch.bfloat16) * 0.1)(Dc, H, D) * (Dc ** -0.5)),
            "w_o": _w((lambda *s: torch.randn(*s, dtype=torch.bfloat16) * 0.1)(H, D, M) * ((H * D) ** -0.5)),
        }
    _B_in = _B_setup()

    return {
        "A_x": _A_in["x"],
        "A_k_cache": _A_in["k_cache"],
        "A_v_cache": _A_in["v_cache"],
        "A_wq": _A_in["wq"],
        "A_wo": _A_in["wo"],
        "B_x": _B_in["x"],
        "B_c_kv": _B_in["c_kv"],
        "B_w_q": _B_in["w_q"],
        "B_w_uk": _B_in["w_uk"],
        "B_w_uv": _B_in["w_uv"],
        "B_w_o": _B_in["w_o"],
    }

def reference(A_x, A_k_cache, A_v_cache, A_wq, A_wo, B_x, B_c_kv, B_w_q, B_w_uk, B_w_uv, B_w_o):
    def _A_ref(x, k_cache, v_cache, wq, wo):
        B, Sq, D = x.shape
        Hq, Dh = 32, 128
        Hkv, Sk = k_cache.shape[1], k_cache.shape[2]
        W = min(4096, max(256, Sk // 4))
        rep = Hq // Hkv
        q = (lambda x, *d: x.permute(*d))((x @ wq).reshape(B, Sq, Hq, Dh), 0, 2, 1, 3)
        k = (lambda x, n, axis: torch.repeat_interleave(x, n, dim=axis))(k_cache[:, :, Sk - W:, :], rep, axis=1)
        v = (lambda x, n, axis: torch.repeat_interleave(x, n, dim=axis))(v_cache[:, :, Sk - W:, :], rep, axis=1)
        scores = torch.einsum("bhqd,bhkd->bhqk", q, k) * (Dh ** -0.5)
        p = _softmax(scores, axis=-1)
        o = torch.einsum("bhqk,bhkd->bhqd", p, v)
        return (lambda x, *d: x.permute(*d))(o, 0, 2, 1, 3).reshape(B, Sq, Hq * Dh) @ wo

    def _B_ref(x, c_kv, w_q, w_uk, w_uv, w_o):
        B, Sq, M = x.shape[0], x.shape[1], x.shape[2]
        Sk = c_kv.shape[1]
        H, D = w_q.shape[1], w_q.shape[2]
        q = torch.einsum("bqm,mhd->bhqd", x, w_q)
        k = torch.einsum("bkc,chd->bhkd", c_kv, w_uk)
        v = torch.einsum("bkc,chd->bhkd", c_kv, w_uv)
        scores = torch.einsum("bhqd,bhkd->bhqk", q, k) * (D ** -0.5)
        off = Sk - Sq
        qi = torch.arange(Sq)[:, None]
        kj = torch.arange(Sk)[None, :]
        cmask = kj <= (qi + off)
        scores = torch.where(cmask[None, None], scores, -1e9)
        p = _softmax(scores, axis=-1)
        ctx = torch.einsum("bhqk,bhkd->bhqd", p, v)
        return torch.einsum("bhqd,hdm->bqm", ctx, w_o)

    a = _A_ref(A_x, A_k_cache, A_v_cache, A_wq, A_wo)
    b = _B_ref(B_x, B_c_kv, B_w_q, B_w_uk, B_w_uv, B_w_o)
    return torch.concatenate([a, b], axis=-1)
```

```python
KNAME = 'concat_heads__sliding_block_cached__compressed_kv_cla__decode_kernel'
class Asm:
    def __init__(self):
        self.l = []
        self.nlab = 0
    def __call__(self, s=''):
        for x in s.split('\n'):
            x = x.strip()
            if x: self.l.append(('' if x.endswith(':') else '    ') + x)
    def lab(self, p='L'):
        self.nlab += 1
        return f'{p}_{self.nlab}'
    def text(self): return '\n'.join(self.l) + '\n'

def wrap(body, grid, block, lds, vgpr=256, sgpr=102, accum=None, name=KNAME, header=''):
    accum = accum if accum is not None else min(256, (vgpr + 3) // 4 * 4)
    return f"""{header}; @launch grid=({grid},1,1) block=({block},1,1) lds={lds}
.amdgcn_target "amdgcn-amd-amdhsa--gfx950"
.text
.globl {name}
.p2align 8
.type {name},@function
{name}:
{body}
.section .rodata,"a"
.p2align 6
.amdhsa_kernel {name}
  .amdhsa_next_free_vgpr {vgpr}
  .amdhsa_next_free_sgpr {sgpr}
  .amdhsa_accum_offset {accum}
  .amdhsa_group_segment_fixed_size 0
  .amdhsa_kernarg_size 112
  .amdhsa_user_sgpr_count 2
  .amdhsa_user_sgpr_kernarg_segment_ptr 1
  .amdhsa_system_sgpr_workgroup_id_x 1
.end_amdhsa_kernel
"""

import re
_REG = re.compile(r'\b([vas])(?:(\d+)|\[(\d+):(\d+)\])')
TRANS = ('v_exp_f32', 'v_log_f32', 'v_rcp_f32', 'v_rsq_f32', 'v_sqrt_f32', 'v_sin_f32', 'v_cos_f32')
def _regs(tok):
    out = set()
    for m in _REG.finditer(tok):
        k = m.group(1)
        if m.group(2) is not None: out.add((k, int(m.group(2))))
        else: out.update((k, i) for i in range(int(m.group(3)), int(m.group(4)) + 1))
    if re.search(r'\bvcc\b', tok): out.add(('s', 'vcc'))
    if re.search(r'\bexec\b', tok): out.add(('s', 'exec'))
    if re.search(r'\bm0\b', tok): out.add(('s', 'm0'))
    return out
def _parse(line):
    s = line.split(';')[0].strip()
    if not s or s.endswith(':') or s.startswith('.'): return None
    p = s.split(None, 1); op = p[0]; ops = [x.strip() for x in p[1].split(',')] if len(p) > 1 else []
    I = dict(op=op, w=set(), r=set(), cls='other', ns=1, txt=s)
    R = [_regs(o) for o in ops]
    allr = set().union(*R) if R else set()
    if op == 's_nop': I['ns'] = int(ops[0], 0) + 1; I['cls'] = 'nop'
    elif op.startswith('v_mfma'):
        I['cls'] = 'mfma'; I['w'] = R[0]; I['A'] = R[1] | R[2]; I['C'] = R[3]; I['r'] = R[1] | R[2] | R[3]
        I['pass'] = 8 if '32x32x16' in op else 4
    elif op.startswith('v_'):
        I['cls'] = 'valu'
        I['w'] = set(R[0]); I['r'] = set().union(*R[1:]) if len(R) > 1 else set()
        if 'swap' in op: I['w'] = R[0] | R[1]; I['r'] = R[0] | R[1]
        if op.startswith(('v_fmac', 'v_dot2c', 'v_writelane')) or 'dpp' in op: I['r'] |= R[0]
        if op.startswith(('v_add_co', 'v_sub_co', 'v_addc_co')): I['w'] |= R[1]
        if op.startswith('v_cmpx'): I['w'].add(('s', 'exec'))
        I['trans'] = op.replace('_e32', '').replace('_e64', '') in TRANS
        I['dpp'] = 'dpp' in op; I['perm'] = 'permlane' in op
        I['rl'] = op.startswith(('v_readfirstlane', 'v_readlane'))
    elif op.startswith('ds_'):
        I['cls'] = 'ds'
        if op.startswith(('ds_read', 'ds_bpermute', 'ds_permute', 'ds_swizzle')) or 'rtn' in op: I['w'] = R[0]; I['r'] = set().union(*R[1:])
        else: I['r'] = allr
    elif op.startswith(('buffer_', 'global_')):
        I['cls'] = 'vmem'
        lds = bool(re.search(r'\blds\b', s)) or '_lds_' in op
        I['lds'] = lds
        if 'load' in op and not lds: I['w'] = R[0]; I['r'] = set().union(*R[1:])
        else: I['r'] = allr
        if 'store' in op and ('x4' in op or 'x3' in op): I['wide'] = R[1] if op.startswith('global_') else R[0]
    elif op.startswith('s_'):
        I['cls'] = 'salu'
        if op.startswith(('s_cmp', 's_bitcmp', 's_cbranch', 's_branch', 's_waitcnt', 's_barrier', 's_endpgm', 's_sleep', 's_setprio')): I['r'] = allr
        else:
            I['w'] = R[0] if R else set(); I['r'] = set().union(*R[1:]) if len(R) > 1 else set()
            if 'saveexec' in op: I['w'] = I['w'] | {('s', 'exec')}
    return I
def _need(P, C):
    n = 0
    vw = {x for x in P['w'] if x[0] != 's'}; sw = {x for x in P['w'] if x[0] == 's'}
    if P['cls'] == 'valu':
        if C['cls'] == 'mfma' and vw & C['r']: n = max(n, 2)
        if C['cls'] == 'mfma' and ('s', 'exec') in sw: n = max(n, 4)
        if C['cls'] == 'valu':
            if (C['dpp'] or C['perm']) and vw & C['r']: n = max(n, 2)
            if C['rl'] and vw & C['r']: n = max(n, 1)
            if P['trans'] and vw & C['r']: n = max(n, 1)
            if sw & C['r']: n = max(n, 4 if C['op'].startswith(('v_readlane', 'v_writelane')) else 2)
            if ('s', 'exec') in sw: n = max(n, 5 if C['dpp'] else 4 if (C['rl'] or C['perm']) else 0)
        if C['cls'] == 'vmem' and sw & C['r']: n = max(n, 5)
        if C['cls'] == 'salu' and sw & C['r']: n = max(n, 1)
    if P['cls'] == 'salu':
        if ('s', 'm0') in sw and C['cls'] == 'vmem' and C.get('lds'): n = max(n, 1)
    if P['cls'] == 'vmem' and 'wide' in P and P['wide'] & C['w']: n = max(n, 2)
    if P['cls'] == 'mfma':
        big = {4: 8, 8: 12}[P['pass']]
        if C['cls'] == 'mfma':
            if P['w'] & C['A']: n = max(n, big)
            if P['w'] & C['C'] and not (P['w'] == C['C'] and P['pass'] == C['pass']): n = max(n, big - 2)
            if P['w'] & C['w'] and not (P['w'] == C['C']): n = max(n, big)
        elif C['cls'] in ('valu', 'ds', 'vmem'):
            if P['w'] & (C['r'] | C['w']): n = max(n, big)
            if C['cls'] == 'valu' and P['C'] & C['w']: n = max(n, {4: 3, 8: 7}[P['pass']])
    return n
def fix_hazards(text):
    out = []; hist = []
    for line in text.split('\n'):
        I = _parse(line)
        if I is None: out.append(line); continue
        need = 0; d = 0
        for P in reversed(hist):
            k = _need(P, I) - d
            if k > need: need = k
            d += P['ns']
            if d > 24: break
        while need > 0:
            k = min(need, 16)
            out.append(f'    s_nop {k-1}'); hist.append(dict(op='s_nop', w=set(), r=set(), cls='nop', ns=k)); need -= k
        out.append(line); hist.append(I)
        if I['op'] in ('s_branch', 's_endpgm'): hist = []
    return '\n'.join(out)
```

```python
import sys, math
from asmlib import *

EPOCH = 0x0
FA    = 0x1000
FB    = 0x2000
QB    = 0x10000
QA    = 0x30000
QABS  = 0x50000
LATE  = 0x100000
PB    = LATE
PO    = LATE + 0x400000
OA    = LATE + 0x480000
CX    = LATE + 0x4A0000
STB   = LATE + 0x4C0000
STA   = LATE + 0x4C8000
STAMPS = 0x800000
SCALE = 128 ** -0.5 * math.log2(math.e)
import struct
def f2u(x): return struct.unpack('<I', struct.pack('<f', x))[0]
SPIN_MAX = 200000

pAX, pAK, pAV, pAWQ, pAWO, pBX, pCKV, pBWQ, pWUK, pWUV, pBWO, pOUT, pDBG, pWS = [4 + 2 * i for i in range(14)]
sWS, sA, sB, sC, sD = 32, 36, 40, 44, 48
sW, sCU, sHD, sPT, sTAG, sT0, sT1, sT2, sT3, sSPIN, sLO, sHI, sSC = 52, 53, 54, 55, 56, 57, 58, 59, 60, 61, 62, 63, 3
sST = 64
def srd(n): return f's[{n}:{n+3}]'
def vr(n, k=4): return f'v[{n}:{n+k-1}]'
def ar(n, k=4): return f'a[{n}:{n+k-1}]'

class Gen:
    def __init__(self, stamps=False, **opt):
        self.a = Asm(); self.stamps = stamps; self.opt = opt; self.names = {'A': [], 'B': []}; self.role = None; self.nst = 0
    def stamp(self, name):
        if not self.stamps: return
        for r in ('AB' if self.role is None else self.role): self.names[r].append(name)
        self.a(f's_memrealtime s[{sST+2*self.nst}:{sST+2*self.nst+1}]')
        self.nst += 1
        assert self.nst <= 18
    def mksrd(self, n, p, size):
        self.a(f's_mov_b32 s{n}, s{p}\ns_mov_b32 s{n+1}, s{p+1}\ns_mov_b32 s{n+2}, {size:#x}\ns_mov_b32 s{n+3}, 0x20000')
    def lgkm(self, n=0):
        self.a(f's_waitcnt lgkmcnt({n})')
    def spin(self, lab):
        a = self.a; ok = a.lab('ok')
        a(f'''s_cbranch_vccz {ok}
        s_add_u32 s{sSPIN}, s{sSPIN}, 1
        s_cmp_lt_u32 s{sSPIN}, {SPIN_MAX}
        s_cbranch_scc1 {lab}
        {ok}:''')
    def dma8(self, srdn, vta, sbase, sm0, soffs, flags='nt', bits=None):
        a = self.a
        for i, o in enumerate(soffs):
            b = ((i >> 1) & 1) if bits is None else bits[i]
            a(f's_add_u32 m0, s{sm0}, {i*1024}')
            a(f's_add_u32 s{sT3}, s{sbase}, {o}')
            a(f'buffer_load_dwordx4 v{vta+b}, {srd(srdn)}, s{sT3} offen {flags} lds')
    def trread(self, dst, vtr, off, steps):
        for G in steps:
            for t in range(2):
                for u in range(2):
                    self.a(f'ds_read_b64_tr_b16 {vr(dst + (G - steps[0])*8 + t*4 + u*2, 2)}, v{vtr+t} offset:{off + G*8192 + u*1024}')
    def gemv(self, acc, xa, wb, nsteps, first=True, waits=None):
        for G in range(nsteps):
            if waits: self.lgkm(waits[G])
            for t in range(2):
                c = '0' if (first and G == 0) else vr(acc + 4*t)
                self.a(f'v_mfma_f32_16x16x32_bf16 {vr(acc+4*t)}, {vr(xa+4*G)}, {vr(wb+G*8+t*4)}, {c}')
    def recv_small(self, soff, vR, vT, vL16, vMW, mo, check=True, extra=None):
        a = self.a; L = a.lab('rcv')
        a(f'{L}:')
        a(f'buffer_load_dwordx4 {vr(vR)}, v{vL16}, {srd(sWS)}, s{soff} offen sc1')
        if extra: a(extra[0])
        a('s_waitcnt vmcnt(0)')
        if check:
            a(f'v_max3_u32 v{vT}, v{vR}, v{vR+1}, v{vR+2}')
            if extra:
                a(f'v_max3_u32 v{vT}, v{vT}, v{extra[1]}, v{extra[1]+1}')
            a(f'v_max_u32 v{vT}, v{vT}, v{vR+3}')
            a(f'v_cmp_eq_u32 vcc, -1, v{vT}')
            self.spin(L)
        self.deint(vR, vT, vMW, mo)
    def deint(self, vR, vT, vMW, mo):
        self.a(f'''v_perm_b32 v{vT}, v{vR+1}, v{vR}, s{sLO}
        v_perm_b32 v{vT+1}, v{vR+3}, v{vR+2}, s{sLO}
        v_perm_b32 v{vT+2}, v{vR+1}, v{vR}, s{sHI}
        v_perm_b32 v{vT+3}, v{vR+3}, v{vR+2}, s{sHI}
        ds_write_b64 v{vMW}, {vr(vT,2)} offset:{mo}
        ds_write_b64 v{vMW+1}, {vr(vT+2,2)} offset:{mo}''')

    def build(self):
        a = self.a; o = self.opt
        vL, vL15, vQ, vL16, vS = 1, 2, 3, 4, 5
        vTA, vTR, vMW, vMR = 6, 8, 10, 12
        vT = 16
        vX, vWF, vAC = 32, 48, 80
        vST = 88
        vR = 92
        self.stamp('start')
        a(f'''
        s_cmp_ge_u32 s2, 256
        s_cbranch_scc1 L_end
        s_load_dwordx16 s[4:19], s[0:1], 0
        s_load_dwordx8 s[20:27], s[0:1], 64
        s_load_dwordx4 s[28:31], s[0:1], 96
        s_getpc_b64 s[{sT0+1}:{sT0+2}]
        v_lshlrev_b32 v{vT}, 6, v0
        global_load_dword v255, v{vT}, s[{sT0+1}:{sT0+2}]
        v_lshrrev_b32 v{vT}, 6, v0
        v_and_b32 v{vL}, 63, v0
        v_readfirstlane_b32 s{sW}, v{vT}
        v_and_b32 v{vL15}, 15, v0
        v_lshrrev_b32 v{vQ}, 4, v{vL}
        v_lshlrev_b32 v{vL16}, 4, v{vL}
        s_and_b32 s{sT0}, s2, 7
        s_bfe_u32 s{sCU}, s2, 0x40003
        s_lshl4_add_u32 s{sCU}, s{sT0}, s{sCU}
        s_lshr_b32 s{sHD}, s{sCU}, 2
        s_and_b32 s{sPT}, s{sCU}, 3
        ; vTA0 = q*8192 + ((l15 ^ 2q) << 4)
        v_lshlrev_b32 v{vT}, 1, v{vQ}
        v_xor_b32 v{vT}, v{vT}, v{vL15}
        v_lshlrev_b32 v{vT+2}, 4, v{vT}
        v_lshl_add_u32 v{vTA}, v{vQ}, 13, v{vT+2}
        v_xor_b32 v{vTA+1}, 0x80, v{vTA}
        v_lshrrev_b32 v{vT+3}, 2, v{vL15}
        v_lshlrev_b32 v{vT+3}, 10, v{vT+3}
        v_lshl_add_u32 v{vT+3}, v{vQ}, 4, v{vT+3}
        s_lshl_b32 s{sT0}, s{sPT}, 8
        v_add_u32 v{vT+3}, s{sT0}, v{vT+3}
        s_lshl2_add_u32 s{sT0}, s{sPT}, s{sW}
        s_lshl_b32 s{sT0}, s{sT0}, 18
        s_lshl_b32 s{sT1}, s{sHD}, 8
        s_add_u32 s{sT0}, s{sT0}, s{sT1}
        s_lshl_b32 s{sT1}, s{sW}, 13
        s_add_u32 s{sT1}, s{sT1}, 0x20000
        s_mov_b32 s{sA+2}, 0x400000
        s_mov_b32 s{sA+3}, 0x20000
        s_mov_b32 s{sWS+2}, 0x10000000
        s_mov_b32 s{sWS+3}, 0x20000
        s_cmp_lt_u32 s2, 128
        s_waitcnt lgkmcnt(0)
        s_cselect_b64 s[{sA}:{sA+1}], s[{pBWQ}:{pBWQ+1}], s[{pAWQ}:{pAWQ+1}]
        s_cselect_b64 s[{sB}:{sB+1}], s[{pBX}:{pBX+1}], s[{pAX}:{pAX+1}]
        s_mov_b64 s[{sWS}:{sWS+1}], s[{pWS}:{pWS+1}]
        s_load_dword s{sTAG}, s[{pWS}:{pWS+1}], {EPOCH}
        v_mov_b32 v{vR}, -1
        v_mov_b32 v{vR+1}, -1
        v_mov_b32 v{vR+2}, -1
        v_mov_b32 v{vR+3}, -1
        ''')
        self.stamp('karg')
        a(f'''
        s_lshr_b32 s{sT2}, s2, 7
        s_or_b32 s{sT2}, s{sT2}, s{sW}
        s_cmp_lg_u32 s{sT2}, 0
        s_cbranch_scc1 L_noclr
        v_lshlrev_b32 v{vT+4}, 4, v{vL15}
        v_lshl_add_u32 v{vT+5}, v{vQ}, 10, v{vT+4}
        v_lshl_add_u32 v{vT+6}, v{vQ}, 15, v{vT+4}
        s_lshl4_add_u32 s{sT2}, s{sHD}, s{sPT}
        s_lshl_b32 s{sT2}, s{sT2}, 8
        s_add_u32 s{sT2}, s{sT2}, {QB}
        buffer_store_dwordx4 {vr(vR)}, v{vT+5}, {srd(sWS)}, s{sT2} offen sc1
        s_lshl_b32 s{sT2}, s{sCU}, 8
        s_add_u32 s{sT2}, s{sT2}, {QABS}
        buffer_store_dwordx4 {vr(vR)}, v{vT+6}, {srd(sWS)}, s{sT2} offen sc1
        L_noclr:
        ''')
        for G in range(4):
            a(f'global_load_dwordx4 {vr(vX+4*G)}, v{vT+3}, s[{sB}:{sB+1}] offset:{64*G}')
        self.dma8(sA, vTA, sT0, sT1, [4 * i * 8192 for i in range(8)])
        a(f'''
        ; vTR0 = 0x20000 + (8q + i)*256 + (((4w + (c>>1)) ^ ((i | (q&1)<<2) << 1)) << 4) + (c&1)*8
        v_lshrrev_b32 v{vT}, 2, v{vL15}
        v_and_b32 v{vT+1}, 1, v{vQ}
        v_lshl_or_b32 v{vT+1}, v{vT+1}, 2, v{vT}
        v_lshlrev_b32 v{vT+1}, 1, v{vT+1}
        v_bfe_u32 v{vT+4}, v{vL}, 1, 1
        s_lshl_b32 s{sT2}, s{sW}, 2
        v_or_b32 v{vT+4}, s{sT2}, v{vT+4}
        v_xor_b32 v{vT+1}, v{vT+1}, v{vT+4}
        v_lshlrev_b32 v{vT+1}, 4, v{vT+1}
        v_and_b32 v{vT+5}, 1, v{vL}
        v_lshl_or_b32 v{vT+1}, v{vT+5}, 3, v{vT+1}
        v_lshl_add_u32 v{vT}, v{vQ}, 3, v{vT}
        v_lshl_add_u32 v{vT+1}, v{vT}, 8, v{vT+1}
        v_add_u32 v{vTR}, 0x20000, v{vT+1}
        v_xor_b32 v{vTR+1}, 32, v{vTR}
        v_xor_b32 v{vS}, v{vQ}, v{vL15}
        v_lshlrev_b32 v{vS}, 4, v{vS}
        v_lshl_add_u32 v{vMR}, v{vL15}, 8, v{vS}
        v_or_b32 v{vT}, s{sT2}, v{vQ}
        v_and_b32 v{vT+1}, 12, v{vL15}
        v_bfe_u32 v{vT+4}, v{vL}, 1, 1
        v_or_b32 v{vT+1}, v{vT+1}, v{vT+4}
        v_xor_b32 v{vT+1}, v{vT+1}, v{vT}
        v_lshlrev_b32 v{vT+1}, 4, v{vT+1}
        v_lshl_or_b32 v{vT+1}, v{vT+5}, 3, v{vT+1}
        v_lshl_add_u32 v{vMW}, v{vT}, 8, v{vT+1}
        s_mov_b32 s{sLO}, 0x05040100
        s_mov_b32 s{sHI}, 0x07060302
        s_mov_b32 s{sSC}, {f2u(SCALE):#x}
        s_mov_b32 s{sSPIN}, 0
        s_waitcnt lgkmcnt(0)
        s_add_u32 s{sTAG}, s{sTAG}, 0x9e3779b1
        s_cmp_ge_u32 s2, 128
        s_cbranch_scc1 L_roleB
        ''')
        nst0 = self.nst
        self.role = 'A'; self.roleA(locals())
        self.nst = nst0
        a('L_roleB:')
        self.role = 'B'; self.roleB(locals())
        a('L_end:\ns_endpgm')
        return a.text()

    def p1(self, V, nwait):
        a = self.a; vT, vTR, vX, vWF, vAC = V['vT'], V['vTR'], V['vX'], V['vWF'], V['vAC']
        a(f's_waitcnt vmcnt({nwait})\ns_barrier')
        self.stamp('w1 landed')
        self.trread(vWF, vTR, 0, range(4))
        self.gemv(vAC, vX, vWF, 4, waits=[12, 8, 4, 0])
        a(f'v_cvt_pk_bf16_f32 v{vT}, v{vAC}, v{vAC+4}')

    def flagcheck(self, vF, n, vaddr, off, wait, first_issued):
        a = self.a; L = a.lab('flg'); L2 = a.lab('flg')
        ld = f'buffer_load_dword{"x%d" % n if n > 1 else ""} {vr(vF, n) if n > 1 else "v%d" % vF}, v{vaddr}, {srd(sWS)}, s{off} offen sc1'
        if first_issued:
            a(f's_waitcnt vmcnt({wait})\ns_branch {L2}')
        a(f'{L}:\n{ld}\ns_waitcnt vmcnt(0)\n{L2}:')
        a(f'v_cmp_ne_u32 vcc, s{sTAG}, v{vF}')
        for i in range(1, n):
            a(f'v_cmp_ne_u32 s[{sT1}:{sT1+1}], s{sTAG}, v{vF+i}\ns_or_b64 vcc, vcc, s[{sT1}:{sT1+1}]')
        self.spin(L)
        return ld

    def ystage(self, V, br, mo, vWO, weights):
        a = self.a
        vL, vL15, vQ, vL16, vT, vMW, vMR, vX, vAC, vST, vR = [V[k] for k in 'vL vL15 vQ vL16 vT vMW vMR vX vAC vST vR'.split()]
        vSt = vT + 8
        a(f'''s_lshl2_add_u32 s{sT0}, s{sHD}, s{sW}
        s_lshl_b32 s{sT0}, s{sT0}, 10
        s_add_u32 s{sT0}, s{sT0}, {OA if br == 0 else CX}
        v_lshlrev_b32 v{vST}, 3, v{vL15}
        v_lshl_add_u32 v{vST}, v{vQ}, 14, v{vST}
        s_lshl4_add_u32 s{sT2}, s{sPT}, s{sW}
        s_lshl_b32 s{sT2}, s{sT2}, 5
        s_add_u32 s{sT2}, s{sT2}, s{sHD}
        s_lshl_b32 s{sT2}, s{sT2}, 7
        s_add_u32 s{sT2}, s{sT2}, {PO + br * 0x40000}''')
        extra = None
        if weights:
            a(f'''v_and_b32 v{vT+7}, 3, v{vL}
            v_lshl_add_u32 v{vT+7}, v{vQ}, 2, v{vT+7}
            v_lshlrev_b32 v{vT+7}, 3, v{vT+7}
            s_lshl_b32 s{sT1}, s{sHD}, 7
            s_add_u32 s{sT1}, s{sT1}, {STA}''')
            extra = (f'buffer_load_dwordx2 {vr(vSt,2)}, v{vT+7}, {srd(sWS)}, s{sT1} offen sc1', vSt)
        a('s_waitcnt vmcnt(0)')
        self.stamp('acked')
        self.recv_small(sT0, vR, vT, vL16, vMW, mo, extra=extra)
        a('s_waitcnt lgkmcnt(0)\ns_barrier')
        self.stamp('Y msg')
        for G in range(4): a(f'ds_read_b128 {vr(vX+4*G)}, v{vMR+G} offset:{mo}')
        D = 'row_mask:0xf bank_mask:0xf'
        if weights:
            a(f'''v_max_f32_dpp v{vT}, v{vSt}, v{vSt} quad_perm:[1,0,3,2] {D}
            v_max_f32_dpp v{vT}, v{vT}, v{vT} quad_perm:[2,3,0,1] {D}
            v_sub_f32 v{vT}, v{vSt}, v{vT}
            v_exp_f32 v{vT}, v{vT}
            v_mul_f32 v{vT+1}, v{vT}, v{vSt+1}
            v_add_f32_dpp v{vT+1}, v{vT+1}, v{vT+1} quad_perm:[1,0,3,2] {D}
            v_add_f32_dpp v{vT+1}, v{vT+1}, v{vT+1} quad_perm:[2,3,0,1] {D}
            v_rcp_f32 v{vT+1}, v{vT+1}
            v_mul_f32 v{vT}, v{vT}, v{vT+1}''')
        self.gemv(vAC, vX, vWO, 4, waits=[3, 2, 1, 0])
        if weights:
            for t in range(2): a(f'v_mul_f32_dpp v{vT+2+t}, v{vT}, v{vAC+4*t} quad_perm:[0,0,0,0] {D}')
            for r in range(1, 4):
                for t in range(2): a(f'v_fmac_f32_dpp v{vT+2+t}, v{vT}, v{vAC+4*t+r} quad_perm:[{r},{r},{r},{r}] {D}')
        else:
            for t in range(2): a(f'v_add_f32 v{vAC+4*t}, v{vAC+4*t}, v{vAC+4*t+1}\nv_add_f32 v{vAC+4*t+2}, v{vAC+4*t+2}, v{vAC+4*t+3}')
            for t in range(2): a(f'v_add_f32 v{vT+2+t}, v{vAC+4*t}, v{vAC+4*t+2}')
        a(f'buffer_store_dwordx2 {vr(vT+2,2)}, v{vST}, {srd(sWS)}, s{sT2} offen sc1')
        self.stamp('Y stored')
        Lx = a.lab('fin'); L = a.lab('red')
        a(f'''s_and_b32 s{sT0}, s{sCU}, 1
        s_or_b32 s{sT0}, s{sT0}, s{sW}
        s_cmp_lg_u32 s{sT0}, 0
        s_cbranch_scc1 {Lx}
        s_lshl_b32 s{sT0}, s{sCU}, 11
        s_add_u32 s{sT0}, s{sT0}, {PO + br * 0x40000}
        s_bfe_u32 s{sT1}, s{sCU}, 0x20003
        s_lshl_b32 s{sT1}, s{sT1}, 11
        s_lshr_b32 s{sT2}, s{sCU}, 5
        s_lshl_b32 s{sT2}, s{sT2}, 8
        s_add_u32 s{sT1}, s{sT1}, s{sT2}
        s_bfe_u32 s{sT2}, s{sCU}, 0x20001
        s_lshl_b32 s{sT2}, s{sT2}, 6
        s_add_u32 s{sT1}, s{sT1}, s{sT2}
        s_add_u32 s{sT1}, s{sT1}, {br * 1024}
        v_and_b32 v{vST}, 7, v{vL}
        v_lshlrev_b32 v{vST}, 2, v{vST}
        v_and_or_b32 v{vST}, v{vL}, 32, v{vST}''')
        self.mksrd(sD, pOUT, 8192)
        a('s_waitcnt vmcnt(0)')
        a(f'{L}:')
        for i in range(4): a(f'buffer_load_dwordx4 {vr(vX+4*i)}, v{vL16}, {srd(sWS)}, s{sT0} offen offset:{1024*i} sc1')
        a(f'''s_waitcnt vmcnt(2)
        v_max3_u32 v{vT}, v{vX}, v{vX+1}, v{vX+2}
        v_max3_u32 v{vT}, v{vT}, v{vX+3}, v{vX+4}
        v_max3_u32 v{vT}, v{vT}, v{vX+5}, v{vX+6}
        v_max_u32 v{vT}, v{vT}, v{vX+7}''')
        for k in range(4): a(f'v_add_f32 v{vT+4+k}, v{vX+k}, v{vX+4+k}')
        a(f'''s_waitcnt vmcnt(0)
        v_max3_u32 v{vT}, v{vT}, v{vX+8}, v{vX+9}
        v_max3_u32 v{vT}, v{vT}, v{vX+10}, v{vX+11}
        v_max3_u32 v{vT}, v{vT}, v{vX+12}, v{vX+13}
        v_max3_u32 v{vT}, v{vT}, v{vX+14}, v{vX+15}
        v_cmp_eq_u32 vcc, -1, v{vT}''')
        self.spin(L)
        for k in range(4): a(f'v_add_f32 v{vX+k}, v{vX+8+k}, v{vX+12+k}')
        for k in range(4): a(f'v_add_f32 v{vT+4+k}, v{vT+4+k}, v{vX+k}')
        a(f'''v_permlane32_swap_b32 v{vT+4}, v{vT+5}
        v_permlane32_swap_b32 v{vT+6}, v{vT+7}
        v_add_f32 v{vT+4}, v{vT+4}, v{vT+5}
        v_add_f32 v{vT+6}, v{vT+6}, v{vT+7}
        v_mov_b32 v{vT+5}, v{vT+4}
        v_mov_b32 v{vT+7}, v{vT+6}
        v_permlane16_swap_b32 v{vT+4}, v{vT+5}
        v_permlane16_swap_b32 v{vT+6}, v{vT+7}
        v_add_f32 v{vT+4}, v{vT+4}, v{vT+5}
        v_add_f32 v{vT+6}, v{vT+6}, v{vT+7}
        v_add_f32_dpp v{vT+4}, v{vT+4}, v{vT+4} row_ror:8 {D}
        v_add_f32_dpp v{vT+6}, v{vT+6}, v{vT+6} row_ror:8 {D}
        v_cvt_pk_bf16_f32 v{vT+4}, v{vT+4}, v{vT+6}
        s_mov_b32 exec_lo, 0xff
        s_mov_b32 exec_hi, 0xff
        buffer_store_dword v{vT+4}, v{vST}, {srd(sD)}, s{sT1} offen''')
        if br == 1:
            a(f'''s_cmp_lg_u32 s{sCU}, 0
            s_cbranch_scc1 {Lx}
            s_mov_b64 exec, 1
            v_mov_b32 v{vT}, s{sTAG}
            v_mov_b32 v{vT+1}, {EPOCH}
            buffer_store_dword v{vT}, v{vT+1}, {srd(sWS)}, 0 offen sc1''')
        a(f'{Lx}:')
        self.stamp('end')
        if self.stamps:
            a(f'''s_mov_b64 exec, 1
            s_waitcnt lgkmcnt(0)
            s_lshl2_add_u32 s{sT0}, s2, s{sW}
            s_lshl_b32 s{sT0}, s{sT0}, 7
            s_add_u32 s{sT0}, s{sT0}, {STAMPS}
            v_mov_b32 v{vT}, 0''')
            for i in range(self.nst):
                a(f'v_mov_b32 v{vT+1}, s{sST+2*i}\nbuffer_store_dword v{vT+1}, v{vT}, {srd(sWS)}, s{sT0} offen offset:{4*i}')
            a(f'v_mov_b32 v{vT+1}, s{sSPIN}\nbuffer_store_dword v{vT+1}, v{vT}, {srd(sWS)}, s{sT0} offen offset:{4*31}')
        a('s_endpgm')

    def roleA(self, V):
        a = self.a
        vL, vL15, vQ, vL16, vS, vTA, vTR, vMW, vMR, vT, vX, vWF, vAC, vST, vR = [V[k] for k in 'vL vL15 vQ vL16 vS vTA vTR vMW vMR vT vX vWF vAC vST vR'.split()]
        D = 'row_mask:0xf bank_mask:0xf'
        vUK = 96
        vK = 128
        vSA = 192
        vP = 96
        vF = 208
        MS1, MS2, MS3, SMX, SML, PL = 0, 0x1000, 0x2000, 0x3000, 0x3040, 0x3100
        a(f'v_add_u32 v{vMW}, 0x20000, v{vMW}\nv_xor_b32 v{vMW+1}, 32, v{vMW}\nv_add_u32 v{vMR}, 0x20000, v{vMR}')
        for G in range(1, 4): a(f'v_xor_b32 v{vMR+G}, {G << 6}, v{vMR}')
        a(f'''s_cmp_lg_u32 s{sW}, 0
        s_cbranch_scc1 L_noflagA
        s_waitcnt vmcnt(12)
        s_lshl_b32 s{sT2}, s{sCU}, 2
        v_mov_b32 v{vT}, s{sTAG}
        v_mov_b32 v{vT+1}, {FA}
        s_mov_b64 exec, 1
        buffer_store_dword v{vT}, v{vT+1}, {srd(sWS)}, s{sT2} offen sc1
        s_mov_b64 exec, -1
        L_noflagA:''')
        self.mksrd(sB, pWUK, 0x400000)
        a(f'''v_lshrrev_b32 v{vT}, 1, v{vQ}
        v_xor_b32 v{vT}, v{vT}, v{vL15}
        v_lshlrev_b32 v{vT}, 4, v{vT}
        v_lshl_add_u32 v{vT}, v{vQ}, 13, v{vT}
        s_sub_u32 s{sT1}, s{sT1}, 0x10000''')
        for i in range(8):
            a(f's_add_u32 m0, s{sT1}, {i*1024}')
            a(f's_add_u32 s{sT3}, s{sT0}, {4*i*8192}')
            a(f'v_xor_b32 v{vT+1}, {(2*i) << 4}, v{vT}')
            a(f'buffer_load_dwordx4 v{vT+1}, {srd(sB)}, s{sT3} offen nt lds')
        a(f'''v_lshlrev_b32 v{vST}, 2, v{vL15}
        v_lshl_add_u32 v{vST+1}, v{vQ}, 15, v{vST}
        v_lshl_add_u32 v{vST}, v{vQ}, 10, v{vST}
        s_lshl4_add_u32 s{sT2}, s{sHD}, s{sPT}
        s_lshl2_add_u32 s{sT2}, s{sT2}, s{sW}
        s_lshl_b32 s{sT2}, s{sT2}, 6
        s_add_u32 s{sT2}, s{sT2}, {QB}
        v_lshl_add_u32 v{vT+8}, v{vL15}, 9, v{vS}
        v_add_u32 v{vT+8}, s{sT1}, v{vT+8}''')
        for G in range(1, 4): a(f'v_xor_b32 v{vT+8+G}, {G << 6}, v{vT+8}')
        self.p1(V, 8)
        a(f'buffer_store_dword v{vT}, v{vST}, {srd(sWS)}, s{sT2} offen sc1')
        self.stamp('qB stored')
        a(f'''v_mov_b32 v{vT+4}, {FA}
        s_lshl_b32 s{sT0}, s{sHD}, 4''')
        self.flagcheck(vF, 4, vT+4, sT0, 0, False)
        for G in range(4):
            for t in range(2): a(f'ds_read_b128 {vr(vUK+G*8+t*4)}, v{vT+8+G} offset:{t*256}')
        a(f'''s_lshl2_add_u32 s{sT0}, s{sHD}, s{sW}
        s_lshl_b32 s{sT0}, s{sT0}, 10
        s_add_u32 s{sT0}, s{sT0}, {QB}
        s_lshl2_add_u32 s{sT2}, s{sCU}, s{sW}
        s_lshl_b32 s{sT2}, s{sT2}, 6
        s_add_u32 s{sT2}, s{sT2}, {QABS}''')
        self.stamp('acked+flag')
        self.recv_small(sT0, vR, vT, vL16, vMW, MS1)
        a('s_waitcnt lgkmcnt(0)\ns_barrier')
        self.stamp('qB msg')
        for G in range(4): a(f'ds_read_b128 {vr(vX+4*G)}, v{vMR+G} offset:{MS1}')
        self.gemv(vAC, vX, vUK, 4, waits=[3, 2, 1, 0])
        self.mksrd(sA, pAK, 0x2000000)
        self.mksrd(sB, pAV, 0x2000000)
        self.mksrd(sC, pAWO, 0x400000)
        for t in range(2): a(f'v_add_f32 v{vAC+4*t}, v{vAC+4*t}, v{vAC+4*t+1}\nv_add_f32 v{vAC+4*t+2}, v{vAC+4*t+2}, v{vAC+4*t+3}')
        for t in range(2): a(f'v_add_f32 v{vT+2+t}, v{vAC+4*t}, v{vAC+4*t+2}')
        a(f'v_cvt_pk_bf16_f32 v{vT}, v{vT+2}, v{vT+3}')
        a(f'buffer_store_dword v{vT}, v{vST+1}, {srd(sWS)}, s{sT2} offen sc1')
        self.stamp('qabs stored')
        a(f'''s_and_b32 s{sT0}, s{sHD}, 3
        s_lshl_b32 s{sT0}, s{sT0}, 3
        s_lshr_b32 s{sT1}, s{sHD}, 2
        s_add_u32 s{sT0}, s{sT0}, s{sT1}
        s_lshl4_add_u32 s{sT0}, s{sT0}, s{sPT}
        s_add_u32 s{sT0}, s{sT0}, 12
        s_lshl_b32 s{sD}, s{sT0}, 16
        s_lshl_b32 s{sT1}, s{sW}, 14
        s_add_u32 s{sT0}, s{sD}, s{sT1}''')
        for i in range(16):
            if i % 4 == 0:
                a(f's_add_u32 m0, s{sT1}, {i*1024}\ns_add_u32 s{sT3}, s{sT0}, {i*1024}')
            a(f'v_xor_b32 v{vT+(i&1)}, {i << 4}, v{vL16}')
            a(f'buffer_load_dwordx4 v{vT+(i&1)}, {srd(sA)}, s{sT3} offen offset:{(i%4)*1024} nt lds')
        a(f'''v_lshlrev_b32 v{vT+4}, 3, v{vL}
        s_mov_b32 s{sD+1}, {FB}
        buffer_load_dwordx2 {vr(vF,2)}, v{vT+4}, {srd(sWS)}, s{sD+1} offen sc1
        v_and_b32 v{vTA}, 0xff, v{vTA}
        v_lshl_add_u32 v{vT+6}, v{vQ}, 8, v{vTA}
        v_xor_b32 v{vT+7}, 0x80, v{vT+6}
        v_lshl_add_u32 v{vTA}, v{vQ}, 10, v{vTA}
        v_xor_b32 v{vTA+1}, 0x80, v{vTA}
        v_lshl_add_u32 v{vT+8}, v{vL15}, 10, v{vS}
        v_add_u32 v{vT+8}, s{sT1}, v{vT+8}
        s_lshl_b32 s{sD+2}, s{sW}, 12''')
        for G in range(1, 4): a(f'v_xor_b32 v{vT+8+G}, {G << 6}, v{vT+8}')
        def vchunk(c):
            a(f's_add_u32 m0, s{sD+2}, {0x10000 + c*16384}\ns_add_u32 s{sT3}, s{sD}, s{sD+2}\ns_add_u32 s{sT3}, s{sT3}, {c*16384}')
            for i in range(4):
                a(f'buffer_load_dwordx4 v{vT+6+(i>>1)}, {srd(sB)}, s{sT3} offen offset:{i*1024} nt lds')
        vchunk(0); vchunk(1)
        self.flagcheck(vF, 2, vT+4, sD+1, 8, True)
        self.stamp('K landed')
        a(f'''s_lshl2_add_u32 s{sT0}, s{sHD}, s{sW}
        s_lshl_b32 s{sT0}, s{sT0}, 10
        s_add_u32 s{sT0}, s{sT0}, {QA}
        buffer_load_dwordx4 {vr(vR)}, v{vL16}, {srd(sWS)}, s{sT0} offen sc1''')
        for t in range(4):
            for G in range(4): a(f'ds_read_b128 {vr(vK+(t*4+G)*4)}, v{vT+8+G} offset:{t*256}')
        vchunk(2); vchunk(3)
        a('s_waitcnt vmcnt(8)')
        self.deint(vR, vT, vMW, MS2)
        a('s_waitcnt lgkmcnt(0)\ns_barrier')
        self.stamp('qA msg')
        for G in range(4): a(f'ds_read_b128 {vr(vX+4*G)}, v{vMR+G} offset:{MS2}')
        for G in range(4):
            self.lgkm(3 - G)
            for t in range(4):
                c = '0' if G == 0 else vr(vSA + 4*t)
                a(f'v_mfma_f32_16x16x32_bf16 {vr(vSA+4*t)}, {vr(vX+4*G)}, {vr(vK+(t*4+G)*4)}, {c}')
        a(f'''s_lshl2_add_u32 s{sT0}, s{sHD}, s{sW}
        s_lshl_b32 s{sT0}, s{sT0}, 15
        s_lshl_b32 s{sT1}, s{sPT}, 8
        s_add_u32 s{sT0}, s{sT0}, s{sT1}
        s_lshl_b32 s{sT1}, s{sW}, 13
        s_lshl_b32 s{sT2}, s{sW}, 2
        s_add_u32 s{sT2}, s{sT2}, 0x20000
        v_lshlrev_b32 v{vT+8}, 4, v{vQ}
        v_add_u32 v{vT+9}, s{sT2}, v{vT+8}
        v_add_u32 v{vT+8}, 0x20000, v{vT+8}
        s_lshl_b32 s{sT2}, s{sW}, 7
        s_add_u32 s{sT2}, s{sT2}, 0x20000
        v_mul_u32_u24 v{vT+10}, 576, v{vQ}
        v_lshl_add_u32 v{vT+10}, v{vL15}, 3, v{vT+10}
        v_add_u32 v{vT+10}, s{sT2}, v{vT+10}
        v_lshrrev_b32 v{vT+11}, 2, v{vL15}
        v_mul_u32_u24 v{vT+11}, 576, v{vT+11}
        v_add_u32 v{vT+11}, v{vT+11}, v{vT+8}''')
        for t in range(4): a(f'v_add_f32 v{vSA+4*t}, v{vSA+4*t}, v{vSA+4*t+1}\nv_add_f32 v{vSA+4*t+2}, v{vSA+4*t+2}, v{vSA+4*t+3}')
        for t in range(4): a(f'v_add_f32 v{vT+t}, v{vSA+4*t}, v{vSA+4*t+2}')
        a(f'v_max_f32 v{vT+4}, v{vT}, v{vT+1}\nv_max3_f32 v{vT+4}, v{vT+4}, v{vT+2}, v{vT+3}')
        for k in (8, 4, 2, 1): a(f'v_max_f32_dpp v{vT+4}, v{vT+4}, v{vT+4} row_ror:{k} {D}')
        a(f'''ds_write_b32 v{vT+9}, v{vT+4} offset:{SMX}
        s_waitcnt lgkmcnt(0)
        s_barrier
        ds_read_b128 {vr(vT+12)}, v{vT+8} offset:{SMX}
        s_waitcnt lgkmcnt(0)
        v_max_f32 v{vT+4}, v{vT+12}, v{vT+13}
        v_max3_f32 v{vT+4}, v{vT+4}, v{vT+14}, v{vT+15}
        v_mul_f32 v{vT+4}, s{sSC}, v{vT+4}''')
        for t in range(4): a(f'v_fma_f32 v{vT+t}, v{vT+t}, s{sSC}, -v{vT+4}')
        for t in range(4): a(f'v_exp_f32 v{vT+t}, v{vT+t}')
        a(f'''v_cvt_pk_bf16_f32 v{vT+12}, v{vT}, v{vT+1}
        v_cvt_pk_bf16_f32 v{vT+13}, v{vT+2}, v{vT+3}
        ds_write_b64 v{vT+10}, {vr(vT+12,2)} offset:{PL}
        v_add_f32 v{vT}, v{vT}, v{vT+1}
        v_add_f32 v{vT+2}, v{vT+2}, v{vT+3}
        v_add_f32 v{vT}, v{vT}, v{vT+2}''')
        for k in (8, 4, 2, 1): a(f'v_add_f32_dpp v{vT}, v{vT}, v{vT} row_ror:{k} {D}')
        a(f'ds_write_b32 v{vT+9}, v{vT} offset:{SML}')
        a(f'v_subrev_u32 v{vTR}, 0x10000, v{vTR}\nv_subrev_u32 v{vTR+1}, 0x10000, v{vTR+1}')
        a('s_waitcnt lgkmcnt(0)\ns_barrier')
        self.stamp('softmax')
        for ks in range(8): a(f'ds_read_b128 {vr(vP+4*ks)}, v{vT+11} offset:{PL + ks*64}')
        a(f'ds_read_b128 {vr(vT+12)}, v{vT+8} offset:{SML}')
        self.trread(vWF, vTR, 0, range(4))
        self.dma8(sC, vTA, sT0, sT1, [4 * i * 1024 for i in range(8)])
        a('s_waitcnt lgkmcnt(0)')
        self.gemv(vAC, vP, vWF, 4)
        a(f'''v_add_f32 v{vT+12}, v{vT+12}, v{vT+13}
        v_add_f32 v{vT+14}, v{vT+14}, v{vT+15}
        v_add_f32 v{vT+5}, v{vT+12}, v{vT+14}
        s_lshr_b32 s{sT0}, s{sCU}, 4
        s_and_b32 s{sT1}, s{sCU}, 15
        s_lshl_b32 s{sT2}, s{sT0}, 6
        s_add_u32 s{sT2}, s{sT2}, s{sT1}
        s_lshl_b32 s{sT0}, s{sT2}, 3
        s_add_u32 s{sT0}, s{sT0}, {STA}
        s_lshl2_add_u32 s{sT2}, s{sT2}, s{sW}
        s_lshl_b32 s{sT2}, s{sT2}, 6
        s_add_u32 s{sT2}, s{sT2}, {OA}
        v_lshlrev_b32 v{vT+12}, 7, v{vQ}
        v_lshlrev_b32 v{vST}, 2, v{vL15}
        v_lshl_add_u32 v{vST}, v{vQ}, 12, v{vST}''')
        for c in (2, 3):
            a(f's_waitcnt vmcnt({8 + (3-c)*4})\ns_barrier')
            if c == 3: self.stamp('V landed')
            self.trread(vK + (c-2)*16, vTR, 0, range(2*c, 2*c+2))
            self.gemv(vAC, vP + 8*c, vK + (c-2)*16, 2, first=False, waits=[4, 0])
        a(f'''v_cvt_pk_bf16_f32 v{vT}, v{vAC}, v{vAC+4}
        buffer_store_dword v{vT}, v{vST}, {srd(sWS)}, s{sT2} offen sc1
        s_cmp_lg_u32 s{sW}, 0
        s_cbranch_scc1 L_nostatA
        s_mov_b32 exec_lo, 0x00010001
        s_mov_b32 exec_hi, 0x00010001
        buffer_store_dwordx2 {vr(vT+4,2)}, v{vT+12}, {srd(sWS)}, s{sT0} offen sc1
        s_mov_b64 exec, -1
        L_nostatA:''')
        self.stamp('oA stored')
        a(f'v_subrev_u32 v{vTR}, 0x10000, v{vTR}\nv_subrev_u32 v{vTR+1}, 0x10000, v{vTR+1}')
        a('s_waitcnt vmcnt(0)\ns_barrier')
        self.trread(vWF, vTR, 0, range(4))
        self.ystage(V, 0, MS3, vWF, True)

    def roleB(self, V):
        a = self.a
        vL, vL15, vQ, vL16, vS, vTA, vTR, vMW, vMR, vT, vX, vWF, vAC, vST, vR = [V[k] for k in 'vL vL15 vQ vL16 vS vTA vTR vMW vMR vT vX vWF vAC vST vR'.split()]
        D = 'row_mask:0xf bank_mask:0xf'
        vCA = 96
        vQK = 100
        vQQ = 108
        vPV = 116
        vF = 124
        vO = 128
        vSB = 192
        vB8 = 208
        aQK, aPV = 0, 128
        SMX, SML, WGT, CL, PF, MS = 0, 0x200, 0x400, 0x600, 0x1000, 0x3000
        WUV, WO = 0x8000, 0x10000
        a(f'v_xor_b32 v{vMW+1}, 32, v{vMW}')
        for G in range(1, 4): a(f'v_xor_b32 v{vMR+G}, {G << 6}, v{vMR}')
        a(f'''s_lshl2_add_u32 s{sT2}, s{sCU}, s{sW}
        s_mul_i32 s{sT2}, s{sT2}, 10240
        s_add_u32 s{sT2}, s{sT2}, {LATE}''')
        for i in range(10):
            if i in (4, 8): a(f's_add_u32 s{sT2}, s{sT2}, 4096')
            a(f'buffer_store_dwordx4 {vr(vR)}, v{vL16}, {srd(sWS)}, s{sT2} offen offset:{(i%4)*1024} sc1')
        self.mksrd(sB, pCKV, 0x1000000)
        a(f'''s_lshl_b32 s{sD}, s{sW}, 12
        s_lshl_b32 s{sD+1}, s{sCU}, 17
        s_add_u32 s{sD+1}, s{sD+1}, s{sD}
        s_lshl_b32 s{sT2}, s{sW}, 4
        v_xor_b32 v{vCA}, s{sT2}, v{vL16}''')
        for i in range(1, 4): a(f'v_xor_b32 v{vCA+i}, {i << 6}, v{vCA}')
        def grp(g):
            a(f's_add_u32 m0, s{sD}, {g*16384}\ns_add_u32 s{sT3}, s{sD+1}, {g*16384}')
            for i in range(4): a(f'buffer_load_dwordx4 v{vCA+i}, {srd(sB)}, s{sT3} offen offset:{i*1024} nt lds')
        grp(0); grp(1)
        a(f'''v_lshlrev_b32 v{vST}, 2, v{vL15}
        v_lshl_add_u32 v{vST+1}, v{vQ}, 10, v{vST}
        v_lshl_add_u32 v{vST}, v{vQ}, 12, v{vST}
        s_lshr_b32 s{sT0}, s{sCU}, 4
        s_and_b32 s{sT1}, s{sCU}, 15
        s_lshl_b32 s{sT2}, s{sT0}, 6
        s_add_u32 s{sT2}, s{sT2}, s{sT1}
        s_lshl2_add_u32 s{sT2}, s{sT2}, s{sW}
        s_lshl_b32 s{sT2}, s{sT2}, 6
        s_add_u32 s{sT2}, s{sT2}, {QA}''')
        self.p1(V, 18)
        a(f'buffer_store_dword v{vT}, v{vST}, {srd(sWS)}, s{sT2} offen sc1')
        self.stamp('qA stored')
        grp(2); grp(3)
        a(f'''; QK: key = l&31, hi = l>>5, swz = ((key&3)<<2) | ((key>>2)&3)
        v_and_b32 v{vT}, 3, v{vL}
        v_bfe_u32 v{vT+1}, v{vL}, 2, 2
        v_lshl_or_b32 v{vT+2}, v{vT}, 2, v{vT+1}
        v_lshrrev_b32 v{vT+3}, 5, v{vL}
        v_xor_b32 v{vT+2}, v{vT+2}, v{vT+3}
        v_lshlrev_b32 v{vT+2}, 4, v{vT+2}
        v_and_b32 v{vT+4}, 31, v{vL}
        v_lshl_add_u32 v{vT+2}, v{vT+4}, 10, v{vT+2}
        v_add_u32 v{vQQ}, 0x20000, v{vT+2}
        s_lshl_b32 s{sT0}, s{sW}, 15
        v_add_u32 v{vQK}, s{sT0}, v{vT+2}''')
        for j in range(1, 8): a(f'v_xor_b32 v{vQK+j}, {j << 5}, v{vQK}\nv_xor_b32 v{vQQ+j}, {j << 5}, v{vQQ}')
        a(f'''; PV: key = 4hi + i, chunk = 16w + 2g + (c>>1), pos = chunk ^ ((i<<2) | hi)
        v_lshl_or_b32 v{vT+2}, v{vT+1}, 2, v{vT+3}
        v_and_b32 v{vT+4}, 1, v{vQ}
        v_lshrrev_b32 v{vT+5}, 1, v{vT}
        v_lshl_or_b32 v{vT+4}, v{vT+4}, 1, v{vT+5}
        v_xor_b32 v{vT+2}, v{vT+2}, v{vT+4}
        v_lshlrev_b32 v{vT+2}, 4, v{vT+2}
        v_and_b32 v{vT+5}, 1, v{vL}
        v_lshl_or_b32 v{vT+2}, v{vT+5}, 3, v{vT+2}
        v_lshl_add_u32 v{vT+4}, v{vT+3}, 2, v{vT+1}
        v_lshl_add_u32 v{vT+2}, v{vT+4}, 10, v{vT+2}
        s_lshl_b32 s{sT0}, s{sW}, 8
        v_add_u32 v{vPV}, s{sT0}, v{vT+2}''')
        for t in range(4):
            for u in range(2):
                if t or u: a(f'v_xor_b32 v{vPV+2*t+u}, {(t << 6) | (u << 5)}, v{vPV}')
        a(f'''s_waitcnt vmcnt(8)
        s_barrier
        s_cmp_lg_u32 s{sW}, 0
        s_cbranch_scc1 L_noflagB
        s_lshl_b32 s{sT2}, s{sCU}, 2
        v_mov_b32 v{vT}, s{sTAG}
        v_mov_b32 v{vT+1}, {FB}
        s_mov_b64 exec, 1
        buffer_store_dword v{vT}, v{vT+1}, {srd(sWS)}, s{sT2} offen sc1
        s_mov_b64 exec, -1
        L_noflagB:''')
        grp(4); grp(5)
        a(f'''v_lshlrev_b32 v{vT+4}, 3, v{vL}
        s_mov_b32 s{sD+2}, {FA}
        s_mov_b32 s{sD+3}, {FB}
        buffer_load_dwordx2 {vr(vF,2)}, v{vT+4}, {srd(sWS)}, s{sD+2} offen sc1''')
        grp(6); grp(7)
        self.flagcheck(vF, 2, vT+4, sD+2, 8, True)
        self.stamp('FA ok')
        a(f'''s_lshr_b32 s{sT0}, s{sCU}, 5
        s_lshl2_add_u32 s{sT0}, s{sT0}, s{sW}
        s_lshl_b32 s{sT0}, s{sT0}, 13
        s_add_u32 s{sT0}, s{sT0}, {QABS}
        s_add_u32 s{sT1}, s{sT0}, 4096
        s_and_b32 s{sT2}, s{sW}, 1
        s_lshl_b32 s{sT2}, s{sT2}, 5
        v_xor_b32 v{vT+8}, s{sT2}, v{vL16}
        s_lshl_b32 s{sT2}, s{sW}, 13
        s_add_u32 s{sT2}, s{sT2}, 0x20000
        v_add_u32 v{vT+8}, s{sT2}, v{vT+8}''')
        for i in range(1, 8): a(f'v_xor_b32 v{vT+8+i}, {(((i & 3) << 2) | (i >> 2)) << 4}, v{vT+8}')
        def ld8():
            for i in range(8): a(f'buffer_load_dwordx4 {vr(vB8+4*i)}, v{vL16}, {srd(sWS)}, s{sT0+(i>>2)} offen offset:{(i&3)*1024} sc1')
        def chk8(addr):
            for i in range(8):
                a(f's_waitcnt vmcnt({7-i})')
                a(f'ds_write_b128 v{addr(i)}, {vr(vB8+4*i)} offset:{i*1024}')
                if i == 0: a(f'v_max_u32 v{vT}, v{vB8}, v{vB8+1}')
                else: a(f'v_max3_u32 v{vT}, v{vT}, v{vB8+4*i}, v{vB8+4*i+1}')
                a(f'v_max3_u32 v{vT}, v{vT}, v{vB8+4*i+2}, v{vB8+4*i+3}')
            a(f'v_cmp_eq_u32 vcc, -1, v{vT}')
        ld8()
        a('s_waitcnt vmcnt(8)\ns_barrier')
        self.stamp('ckv landed')
        for st in range(32): a(f'ds_read_b128 {ar(aQK+4*st)}, v{vQK+(st&7)} offset:{(st>>3)*256}')
        def pvrd(ks, t, u): a(f'ds_read_b64_tr_b16 {ar(aPV+(ks*4+t)*4+2*u, 2)}, v{vPV+2*t+u} offset:{(ks&3)*16384 + u*8192}')
        for t in range(4):
            for u in range(2): pvrd(0, t, u)
        a('s_branch L_q2\nL_q1:\ns_waitcnt lgkmcnt(0)')
        ld8()
        a('L_q2:')
        chk8(lambda i: vT + 8 + i)
        self.spin('L_q1')
        a(f'buffer_load_dwordx2 {vr(vF,2)}, v{vT+4}, {srd(sWS)}, s{sD+3} offen sc1')
        a('s_waitcnt lgkmcnt(0)\ns_barrier')
        self.stamp('qabs msg')
        NR = 4
        pend = [(ks, t, u) for ks in range(1, 8) for t in range(4) for u in range(2)]
        q = []
        def qrd(st): a(f'ds_read_b128 {vr(vB8+4*(st&7))}, v{vQQ+(st&7)} offset:{(st>>3)*256}'); q.append(('q', st))
        for st in range(NR): qrd(st)
        for st in range(32):
            if st + NR < 32: qrd(st + NR)
            n = len(q) - 1 - q.index(('q', st))
            self.lgkm(min(n, 15))
            c = '0' if st == 0 else vr(vSB, 16)
            a(f'v_mfma_f32_32x32x16_bf16 {vr(vSB,16)}, {ar(aQK+4*st)}, {vr(vB8+4*(st&7))}, {c}')
            for _ in range(2):
                if pend:
                    ks, t, u = pend.pop(0)
                    if ks == 4: a(f'v_add_u32 v{vPV+2*t+u}, 0x10000, v{vPV+2*t+u}')
                    pvrd(ks, t, u); q.append(('p', ks, t, u))
        self.mksrd(sA, pWUV, 0x400000)
        self.mksrd(sC, pBWO, 0x400000)
        a(f'''v_and_b32 v{vT+8}, 31, v{vL}
        v_lshlrev_b32 v{vT+8}, 4, v{vT+8}
        s_lshl_b32 s{sT2}, s{sW}, 2
        v_add_u32 v{vT+9}, s{sT2}, v{vT+8}
        s_lshl_b32 s{sT2}, s{sW}, 11
        v_add_u32 v{vT+10}, s{sT2}, v{vL16}''')
        a(f'v_max3_f32 v{vT}, v{vSB}, v{vSB+1}, v{vSB+2}\nv_max3_f32 v{vT+1}, v{vSB+3}, v{vSB+4}, v{vSB+5}')
        for k in range(6, 14, 4): a(f'v_max3_f32 v{vT}, v{vT}, v{vSB+k}, v{vSB+k+1}\nv_max3_f32 v{vT+1}, v{vT+1}, v{vSB+k+2}, v{vSB+k+3}')
        a(f'''v_max3_f32 v{vT}, v{vT}, v{vSB+14}, v{vSB+15}
        v_max_f32 v{vT}, v{vT}, v{vT+1}
        v_mov_b32 v{vT+1}, v{vT}
        v_permlane32_swap_b32 v{vT}, v{vT+1}
        v_max_f32 v{vT}, v{vT}, v{vT+1}
        ds_write_b32 v{vT+9}, v{vT} offset:{SMX}
        s_waitcnt lgkmcnt(0)
        s_barrier
        ds_read_b128 {vr(vT+12)}, v{vT+8} offset:{SMX}''')
        self.stamp('QK')
        a(f'''v_and_b32 v{vTA}, 0xff, v{vTA}
        v_lshl_add_u32 v{vT+6}, v{vQ}, 18, v{vTA}
        v_xor_b32 v{vT+7}, 0x80, v{vT+6}
        s_lshl_b32 s{sT0}, s{sPT}, 5
        s_add_u32 s{sT0}, s{sT0}, s{sW}
        s_lshl_b32 s{sT0}, s{sT0}, 15
        s_lshl_b32 s{sT1}, s{sHD}, 8
        s_add_u32 s{sT0}, s{sT0}, s{sT1}
        s_lshl_b32 s{sT1}, s{sW}, 13
        s_add_u32 s{sT1}, s{sT1}, {WUV}''')
        self.dma8(sA, vT+6, sT0, sT1, [((i >> 1) + 16 * (i & 1)) * 8192 for i in range(8)])
        a(f'''s_waitcnt lgkmcnt(0)
        v_max_f32 v{vT+2}, v{vT+12}, v{vT+13}
        v_max3_f32 v{vT+2}, v{vT+2}, v{vT+14}, v{vT+15}
        v_mul_f32 v{vT+2}, s{sSC}, v{vT+2}''')
        for r in range(16): a(f'v_fma_f32 v{vSB+r}, v{vSB+r}, s{sSC}, -v{vT+2}')
        for r in range(16): a(f'v_exp_f32 v{vSB+r}, v{vSB+r}')
        for k in range(8): a(f'v_cvt_pk_bf16_f32 v{vB8+k}, v{vSB+2*k}, v{vSB+2*k+1}')
        a(f'ds_write_b128 v{vT+10}, {vr(vB8)} offset:{PF}\nds_write_b128 v{vT+10}, {vr(vB8+4)} offset:{PF+1024}')
        for k in (8, 4, 2, 1):
            for r in range(k): a(f'v_add_f32 v{vSB+r}, v{vSB+r}, v{vSB+r+k}')
        a(f'''v_mov_b32 v{vT+1}, v{vSB}
        v_permlane32_swap_b32 v{vSB}, v{vT+1}
        v_add_f32 v{vT}, v{vSB}, v{vT+1}
        ds_write_b32 v{vT+9}, v{vT} offset:{SML}''')
        self.flagcheck(vF, 2, vT+4, sD+3, 8, True)
        a('s_waitcnt lgkmcnt(0)\ns_barrier')
        self.stamp('softmax')
        for ks in range(8): a(f'ds_read_b128 {vr(vB8+4*ks)}, v{vL16} offset:{PF + ks*1024}')
        a(f'ds_read_b128 {vr(vT+12)}, v{vT+8} offset:{SML}')
        for ks in range(8):
            self.lgkm(8 - ks if ks < 7 else 0)
            for t in range(4):
                c = '0' if ks == 0 else vr(vO + 16*t, 16)
                a(f'v_mfma_f32_32x32x16_bf16 {vr(vO+16*t,16)}, {vr(vB8+4*ks)}, {ar(aPV+(ks*4+t)*4)}, {c}')
        a(f'''v_add_f32 v{vT+12}, v{vT+12}, v{vT+13}
        v_add_f32 v{vT+14}, v{vT+14}, v{vT+15}
        v_add_f32 v{vT+3}, v{vT+12}, v{vT+14}
        s_lshl_b32 s{sT0}, s{sCU}, 8
        s_add_u32 s{sT1}, s{sT0}, {STB}
        s_lshl_b32 s{sT2}, s{sW}, 15
        s_add_u32 s{sT0}, s{sT0}, s{sT2}
        s_add_u32 s{sT0}, s{sT0}, {PB}
        v_lshrrev_b32 v{vT+12}, 5, v{vL}
        v_and_b32 v{vT+13}, 1, v{vQ}
        v_lshl_or_b32 v{vT+12}, v{vT+12}, 2, v{vT+13}
        v_lshlrev_b32 v{vT+13}, 4, v{vL15}
        v_lshl_add_u32 v{vST}, v{vT+12}, 17, v{vT+13}
        s_cmp_lg_u32 s{sW}, 0
        s_cbranch_scc1 L_nostatB
        s_mov_b32 exec_hi, 0
        buffer_store_dwordx2 {vr(vT+2,2)}, v{vT+4}, {srd(sWS)}, s{sT1} offen sc1
        s_mov_b32 exec_hi, -1
        L_nostatB:''')
        for rp in range(8):
            r = 2 * rp; x = vB8 + 4 * rp
            a(f'''v_cvt_pk_bf16_f32 v{x}, v{vO+r}, v{vO+16+r}
            v_cvt_pk_bf16_f32 v{x+1}, v{vO+32+r}, v{vO+48+r}
            v_cvt_pk_bf16_f32 v{x+2}, v{vO+r+1}, v{vO+16+r+1}
            v_cvt_pk_bf16_f32 v{x+3}, v{vO+32+r+1}, v{vO+48+r+1}
            s_add_u32 s{sT3}, s{sT0}, {((r >> 2) * 8 + (r & 3)) << 17}
            v_permlane16_swap_b32 v{x}, v{x+2}
            v_permlane16_swap_b32 v{x+1}, v{x+3}
            buffer_store_dwordx4 {vr(x)}, v{vST}, {srd(sWS)}, s{sT3} offen sc1''')
        self.stamp('PB stored')
        a(f'''v_and_b32 v{vT+8}, 31, v{vL}
        v_lshlrev_b32 v{vT+9}, 8, v{vT+8}
        s_lshl_b32 s{sT0}, s{sW}, 13
        s_lshl_b32 s{sT1}, s{sHD}, 3
        s_add_u32 s{sT0}, s{sT0}, s{sT1}
        s_add_u32 s{sT0}, s{sT0}, {STB}
        s_lshl_b32 s{sT1}, s{sW}, 6
        v_lshl_add_u32 v{vT+8}, v{vT+8}, 1, s{sT1}
        L_stb:
        buffer_load_dwordx2 {vr(vT+2,2)}, v{vT+9}, {srd(sWS)}, s{sT0} offen sc1
        s_waitcnt vmcnt(0)
        v_max_u32 v{vT}, v{vT+2}, v{vT+3}
        v_cmp_eq_u32 vcc, -1, v{vT}''')
        self.spin('L_stb')
        self.stamp('acked+stats')
        a(f'''s_lshl2_add_u32 s{sT0}, s{sCU}, s{sW}
        s_lshl_b32 s{sT0}, s{sT0}, 13
        s_add_u32 s{sT0}, s{sT0}, {PB}
        s_add_u32 s{sT1}, s{sT0}, 4096''')
        ld8()
        a(f'v_mov_b32 v{vT}, v{vT+2}')
        for k in (8, 4, 2, 1): a(f'v_max_f32_dpp v{vT}, v{vT}, v{vT} row_ror:{k} {D}')
        a(f'''v_mov_b32 v{vT+1}, v{vT}
        v_permlane16_swap_b32 v{vT}, v{vT+1}
        v_max_f32 v{vT}, v{vT}, v{vT+1}
        v_sub_f32 v{vT+2}, v{vT+2}, v{vT}
        v_exp_f32 v{vT+2}, v{vT+2}
        v_mul_f32 v{vT}, v{vT+2}, v{vT+3}''')
        for k in (8, 4, 2, 1): a(f'v_add_f32_dpp v{vT}, v{vT}, v{vT} row_ror:{k} {D}')
        a(f'''v_mov_b32 v{vT+1}, v{vT}
        v_permlane16_swap_b32 v{vT}, v{vT+1}
        v_add_f32 v{vT}, v{vT}, v{vT+1}
        v_rcp_f32 v{vT}, v{vT}
        v_mul_f32 v{vT}, v{vT}, v{vT+2}
        v_cvt_pk_bf16_f32 v{vT}, v{vT}, v{vT}
        ds_write_b16 v{vT+8}, v{vT} offset:{WGT}
        s_lshl_b32 s{sT2}, s{sW}, 13
        s_add_u32 s{sT2}, s{sT2}, 0x20000
        v_lshl_add_u32 v{vT+6}, v{vQ}, 8, v{vTA}
        v_add_u32 v{vT+6}, s{sT2}, v{vT+6}
        v_xor_b32 v{vT+7}, 0x80, v{vT+6}
        v_lshl_add_u32 v{vTA}, v{vQ}, 10, v{vTA}
        v_xor_b32 v{vTA+1}, 0x80, v{vTA}
        v_lshrrev_b32 v{vT+10}, 2, v{vL15}
        v_lshlrev_b32 v{vT+11}, 4, v{vQ}
        v_lshl_add_u32 v{vT+9}, v{vT+10}, 6, v{vT+11}
        v_mul_u32_u24 v{vT+12}, 320, v{vT+10}
        v_add_u32 v{vT+11}, v{vT+12}, v{vT+11}
        v_mul_u32_u24 v{vT+12}, 320, v{vQ}
        v_lshl_add_u32 v{vT+12}, v{vL15}, 1, v{vT+12}
        s_lshl_b32 s{sT2}, s{sW}, 6
        v_add_u32 v{vT+12}, s{sT2}, v{vT+12}
        v_subrev_u32 v{vT+14}, {0x20000 - WUV}, v{vTR}
        v_subrev_u32 v{vT+15}, {0x20000 - WUV}, v{vTR+1}
        s_waitcnt lgkmcnt(0)
        s_barrier
        ds_read_b128 {vr(vR)}, v{vT+9} offset:{WGT}''')
        vUV = vO; vWO = vO + 32
        self.trread(vUV, vT+14, 0, range(4))
        self.lgkm(15)
        a('s_waitcnt lgkmcnt(0)')
        for G in range(4):
            a(f'v_cmp_eq_u32 vcc, {G}, v{vT+10}')
            for k in range(4): a(f'v_cndmask_b32 v{vX+4*G+k}, 0, v{vR+k}, vcc')
        a('s_branch L_p2\nL_p1:\ns_waitcnt lgkmcnt(0)')
        ld8()
        a('L_p2:')
        chk8(lambda i: vT + 6 + ((i >> 1) & 1))
        self.spin('L_p1')
        a(f'''s_lshl2_add_u32 s{sT0}, s{sHD}, s{sW}
        s_lshl_b32 s{sT0}, s{sT0}, 15
        s_lshl_b32 s{sT1}, s{sPT}, 8
        s_add_u32 s{sT0}, s{sT0}, s{sT1}
        s_lshl_b32 s{sT1}, s{sW}, 13
        s_add_u32 s{sT1}, s{sT1}, {WO}''')
        a('s_waitcnt lgkmcnt(0)\ns_barrier')
        self.stamp('PB msg')
        self.trread(vWF, vTR, 0, range(4))
        self.dma8(sC, vTA, sT0, sT1, [4 * i * 1024 for i in range(8)])
        self.gemv(vAC, vX, vWF, 4, waits=[12, 8, 4, 0])
        a(f'''s_lshl4_add_u32 s{sT2}, s{sHD}, s{sPT}
        s_lshl2_add_u32 s{sT2}, s{sT2}, s{sW}
        s_lshl_b32 s{sT2}, s{sT2}, 6
        s_add_u32 s{sT2}, s{sT2}, {CX}
        v_cvt_pk_bf16_f32 v{vT}, v{vAC}, v{vAC+4}
        ds_write_b16 v{vT+12}, v{vT} offset:{CL}
        ds_write_b16_d16_hi v{vT+12}, v{vT} offset:{CL+32}
        s_waitcnt lgkmcnt(0)
        s_barrier''')
        for G in range(4): a(f'ds_read_b128 {vr(vX+4*G)}, v{vT+11} offset:{CL + G*64}')
        self.gemv(vAC, vX, vUV, 4, waits=[3, 2, 1, 0])
        a(f'''v_cvt_pk_bf16_f32 v{vT}, v{vAC}, v{vAC+4}
        buffer_store_dword v{vT}, v{vST+1}, {srd(sWS)}, s{sT2} offen sc1''')
        self.stamp('cx stored')
        a('s_waitcnt vmcnt(0)\ns_barrier')
        self.trread(vWO, vT+14, WO - WUV, range(4))
        self.ystage(V, 1, MS, vWO, False)

HEADER = open('concat_heads__sliding_block_cached__compressed_kv_cla__decode.s.ref').read().split('; Override launch')[0] if len(sys.argv) > 1 and sys.argv[1] == 'final' else ''
def generate(stamps=False, header='', **opt):
    g = Gen(stamps=stamps, **opt)
    body = fix_hazards(g.build())
    body += '\n.fill 4096, 4, 0xbf800000\n' if opt.get('pad', True) else ''
    return wrap(body, 256, 256, 163840, vgpr=512, accum=256, header=header), g.names
if __name__ == '__main__':
    s, _ = generate(header=HEADER)
    out = 'concat_heads__sliding_block_cached__compressed_kv_cla__decode.s' if HEADER else 'k.s'
    open(out, 'w').write(s)
```
